```python
import torch

def _softmax(x, axis=-1):
    return torch.softmax(x, dim=axis)
def _gelu(x):
    return torch.nn.functional.gelu(x, approximate="tanh")
def _silu(x):
    return torch.nn.functional.silu(x)
def _sigmoid(x):
    return torch.sigmoid(x)
def _layernorm(x, axis=-1, eps=1e-5):
    m = x.mean(dim=axis, keepdim=True)
    v = x.var(dim=axis, keepdim=True, unbiased=False)
    return (x - m) / torch.sqrt(v + eps)
def _scatter_add(tgt, idx, src, axis=0):
    return tgt.clone().index_add_(axis, idx, src)
def _segment_sum(src, seg, n):
    out = torch.zeros((n,) + src.shape[1:], dtype=src.dtype)
    return out.index_add_(0, seg, src)
def _pad(x, pw):
    flat = tuple(v for pair in reversed(pw) for v in pair)
    return torch.nn.functional.pad(x, flat)

kernel_name = 'parallel_sum__gqa_block_cached__dense_activation_silu__decode'

def setup_inputs():

    _w = (lambda a: (lambda t: t.to(torch.bfloat16) if t.is_floating_point() else t)(torch.as_tensor(a)))
    def _A_setup():
        B, Sq, D = 2, 1, 1024
        Hq, Hkv, Sk, Dh = 32, 4, 32768, 128
        assert Hq % Hkv == 0, (Hq, Hkv)
        return {
            "x": _w((lambda *s: torch.randn(*s, dtype=torch.bfloat16) * 0.05)(B, Sq, D)),
            "k_cache": _w((lambda *s: torch.randn(*s, dtype=torch.bfloat16) * 3.2)(B, Hkv, Sk, Dh)),
            "v_cache": _w((lambda *s: torch.randn(*s, dtype=torch.bfloat16) * 0.8)(B, Hkv, Sk, Dh)),
            "wq": _w((lambda *s: torch.randn(*s, dtype=torch.bfloat16) * 3.2)(D, Hq * Dh) * (D ** -0.5)),
            "wo": _w((lambda *s: torch.randn(*s, dtype=torch.bfloat16) * 0.8)(Hq * Dh, D) * ((Hq * Dh) ** -0.5)),
        }
    _A_in = _A_setup()

    def _B_setup():
        B, S, D, F = 2, 1, 1024, 3584
        return {
            "x": _w((lambda *s: torch.randn(*s, dtype=torch.bfloat16) * 0.05)(B, S, D)),
            "w1": _w((lambda *s: torch.randn(*s, dtype=torch.bfloat16) * 3.2)(D, F) * (D ** -0.5)),
            "w2": _w((lambda *s: torch.randn(*s, dtype=torch.bfloat16) * 0.4)(F, D) * (F ** -0.5)),
        }
    _B_in = _B_setup()

    return {
        "A_x": _A_in["x"],
        "A_k_cache": _A_in["k_cache"],
        "A_v_cache": _A_in["v_cache"],
        "A_wq": _A_in["wq"],
        "A_wo": _A_in["wo"],
        "B_x": _B_in["x"],
        "B_w1": _B_in["w1"],
        "B_w2": _B_in["w2"],
    }

def reference(A_x, A_k_cache, A_v_cache, A_wq, A_wo, B_x, B_w1, B_w2):
    def _A_ref(x, k_cache, v_cache, wq, wo):
        B, Sq, D = x.shape
        Hq, Dh = 32, 128
        Hkv = k_cache.shape[1]
        rep = Hq // Hkv
        q = (lambda x, *d: x.permute(*d))((x @ wq).reshape(B, Sq, Hq, Dh), 0, 2, 1, 3)
        k = (lambda x, n, axis: torch.repeat_interleave(x, n, dim=axis))(k_cache, rep, axis=1)
        v = (lambda x, n, axis: torch.repeat_interleave(x, n, dim=axis))(v_cache, rep, axis=1)
        scores = torch.einsum("bhqd,bhkd->bhqk", q, k) * (Dh ** -0.5)
        p = _softmax(scores, axis=-1)
        o = torch.einsum("bhqk,bhkd->bhqd", p, v)
        return (lambda x, *d: x.permute(*d))(o, 0, 2, 1, 3).reshape(B, Sq, Hq * Dh) @ wo

    def _B_ref(x, w1, w2):
        h = torch.einsum("bsd,df->bsf", x, w1)
        h = _silu(h)
        out = torch.einsum("bsf,fd->bsd", h, w2)
        return out

    x = A_x
    xn = _layernorm(x, axis=-1)
    return x + _A_ref(xn, A_k_cache, A_v_cache, A_wq, A_wo) + _B_ref(xn, B_w1, B_w2)
```

```python
import re
TRANS = ("v_exp_f32", "v_log_f32", "v_rcp_f32", "v_rsq_f32", "v_sqrt_f32", "v_sin_f32", "v_cos_f32")
def regs(tok):
    tok = tok.strip().lstrip("-")
    if tok.startswith("abs(") or tok.startswith("|"):
        tok = tok.replace("abs(", "").replace(")", "").replace("|", "")
    m = re.fullmatch(r"([vs])(\d+)", tok)
    if m: return m.group(1), {int(m.group(2))}
    m = re.fullmatch(r"([vs])\[(\d+):(\d+)\]", tok)
    if m: return m.group(1), set(range(int(m.group(2)), int(m.group(3)) + 1))
    if tok == "vcc": return "s", {106, 107}
    if tok == "exec": return "s", {126, 127}
    return None, set()

class Asm:
    def __init__(self):
        self.L = []
        self.pos = 0
        self.st = dict(valu={}, trans={}, mfma={}, dot={}, srcc={}, store={}, sval={})
        self.mfma_last = {}
        self.snap = {}
        self.vm = []
        self.nops = 0
    def raw(self, s): self.L.append(s)
    def comment(self, s): self.L.append("    ; " + s)
    def _need(self, table, rs, n):
        w = 0
        for r in rs:
            if r in self.st[table]:
                w = max(w, n - (self.pos - self.st[table][r] - 1))
        return w
    def label(self, name):
        for (p, st) in self.snap.pop(name, []):
            for k in st:
                for r, t in st[k].items():
                    t2 = self.pos - (p - t)
                    if t2 > self.st[k].get(r, -10**9): self.st[k][r] = t2
        self.L.append(name + ":")
    def looplabel(self, name):
        self.L.append(name + ":")
    def flush(self):
        w = 0
        for k, n in (("valu", 2), ("trans", 1), ("mfma", 8), ("dot", 3), ("srcc", 3), ("store", 2), ("sval", 5)):
            for r, t in self.st[k].items():
                w = max(w, n - (self.pos - t - 1))
        if w > 0: self.nop(w)
    def nop(self, w):
        while w > 0:
            k = min(w, 16)
            self.L.append(f"    s_nop {k-1}"); self.pos += k; w -= k; self.nops += 1
    def __call__(self, line):
        line = line.strip()
        body = line.split(";")[0].strip()
        parts = body.split(None, 1)
        op = parts[0]
        rest = parts[1] if len(parts) > 1 else ""
        ops = []; depth = 0; cur = ""
        for ch in rest:
            if ch == "[": depth += 1
            if ch == "]": depth -= 1
            if ch == "," and depth == 0: ops.append(cur.strip()); cur = ""
            else: cur += ch
        if cur.strip(): ops.append(cur.strip())
        mods = ""
        if ops:
            sp = ops[-1].split(None, 1)
            if len(sp) > 1 and not ops[-1].startswith("hwreg"):
                ops[-1] = sp[0]; mods = sp[1]
        R = [regs(o) for o in ops]
        vd, vs_, sd, ss = set(), set(), set(), set()
        isv = op.startswith("v_")
        ismfma = op.startswith("v_mfma")
        isdpp = op.endswith("_dpp") or "row_" in mods or "quad_perm" in mods
        isvm = op.startswith(("buffer_", "global_"))
        isds = op.startswith("ds_")
        def add(i, dst):
            k, s = R[i]
            if k == "v": (vd if dst else vs_).update(s)
            elif k == "s": (sd if dst else ss).update(s)
        w = 0
        if isv:
            add(0, True)
            start = 1
            if op.startswith(("v_add_co", "v_addc_co", "v_sub_co", "v_subb_co", "v_div_scale")): add(1, True); start = 2
            for i in range(start, len(ops)): add(i, False)
            if op.startswith("v_permlane"): add(0, False); add(1, True)
            if op.startswith(("v_fmac", "v_dot2c", "v_writelane")) or isdpp: add(0, False)
            if op.startswith("v_cndmask") and len(ops) == 3: ss.update({106, 107})
            if ismfma:
                A_, B_, C_ = R[1][1], R[2][1], (R[3][1] if R[3][0] == "v" else set())
                w = max(w, self._need("valu", vs_, 2), self._need("dot", vs_ | vd, 3))
                w = max(w, self._need("mfma", A_ | B_, 8))
                exact = False
                if C_:
                    f = min(C_)
                    exact = f in self.mfma_last and self.mfma_last[f] == frozenset(C_)
                    if not exact: w = max(w, self._need("mfma", C_, 6))
                if not (exact and vd == C_): w = max(w, self._need("mfma", vd - (C_ if exact else set()), 8))
            else:
                w = max(w, self._need("mfma", vs_ | vd, 8))
                w = max(w, self._need("srcc", vd, 3))
                w = max(w, self._need("store", vd, 2))
                if op.startswith("v_dot"):
                    ab = set()
                    for i in (1, 2):
                        if R[i][0] == "v": ab |= R[i][1]
                    w = max(w, self._need("dot", ab, 3))
                else:
                    w = max(w, self._need("dot", vs_ | vd, 3))
                if op not in TRANS: w = max(w, self._need("trans", vs_, 1))
                if isdpp: w = max(w, self._need("valu", vs_, 2))
                if op.startswith("v_permlane"): w = max(w, self._need("valu", vs_, 2))
                if op.startswith(("v_readlane", "v_readfirstlane")):
                    w = max(w, self._need("valu", vs_, 1), self._need("sval", ss, 4))
                if op.startswith("v_writelane"): w = max(w, self._need("sval", ss, 4))
                w = max(w, self._need("sval", ss, 2))
        elif isvm or isds:
            isload = ("_load" in op) or op.startswith(("ds_read", "ds_bpermute", "ds_permute", "ds_swizzle"))
            for i in range(len(ops)): add(i, isload and i == 0)
            w = max(w, self._need("mfma", vs_ | vd, 8), self._need("dot", vs_ | vd, 3), self._need("trans", vs_, 1))
            w = max(w, self._need("sval", ss, 5))
            w = max(w, self._need("store", vd, 2))
        else:
            for i in range(len(ops)): add(i, False)
            if op.startswith("s_cbranch_vcc"): ss.update({106, 107})
            w = max(w, self._need("sval", ss, 1))
        if w > 0: self.nop(w)
        self.L.append("    " + line)
        p = self.pos
        if op == "s_nop": self.pos += int(ops[0], 0) + 1
        else: self.pos += 1
        if isv:
            if ismfma:
                for r in vd: self.st["mfma"][r] = p
                self.mfma_last[min(vd)] = frozenset(vd)
                if R[3][0] == "v":
                    for r in R[3][1]: self.st["srcc"][r] = p
            else:
                for r in vd:
                    self.st["valu"][r] = p
                    self.st["mfma"].pop(r, None)
                    if op in TRANS: self.st["trans"][r] = p
                    if op.startswith("v_dot"): self.st["dot"][r] = p
                    for f in list(self.mfma_last):
                        if r in self.mfma_last[f]: del self.mfma_last[f]
                for r in sd: self.st["sval"][r] = p
        if (isvm and "store" in op and ("x4" in op or "x3" in op)):
            data = R[0][1] if op.startswith("buffer_") else R[1][1]
            for r in data: self.st["store"][r] = p
        if op.startswith(("s_cbranch", "s_branch")):
            tgt = ops[0]
            self.snap.setdefault(tgt, []).append((self.pos, {k: dict(v) for k, v in self.st.items()}))
    def vm_issue(self, line, tag):
        self(line); self.vm.append(tag)
    def vm_n(self, tag):
        i = len(self.vm) - 1 - self.vm[::-1].index(tag)
        return len(self.vm) - 1 - i
    def vm_wait(self, tag):
        n = self.vm_n(tag)
        assert n <= 63
        if getattr(self, "_vm_done", -1) >= len(self.vm) - 1 - n: return
        self(f"s_waitcnt vmcnt({n})")
        self._vm_done = len(self.vm) - 1 - n
    def vm_all(self):
        self("s_waitcnt vmcnt(0)"); self._vm_done = len(self.vm) - 1
    def text(self): return "\n".join(self.L) + "\n"
```

```python
import sys
sys.path.insert(0, "work")
from asmdsl import Asm
KNAME = "parallel_sum__gqa_block_cached__dense_activation_silu__decode_kernel"
HEADER = open("parallel_sum__gqa_block_cached__dense_activation_silu__decode.s.ref").read().split("; Override launch geometry")[0]

WS_ML = 0x8000; WS_Q = 0x20000; WS_H = 0x40000; WS_O = 0x100000; WS_F = 0x200000; WS_A = 0x400000; WS_SIZE = 0x600000
WS_STAMP = 0x1000000
L_ST = 0; L_QS = 2048; L_MX = 4096; L_LS = 4352; L_O2 = 4608; L_RF = 5120; L_RA = 6144; L_OR = 8192; L_PART = L_OR
LDS_BYTES = 8192 + 32768

def vr(a, n=4): return f"v[{a}:{a+n-1}]"

def gen(path, W=4, NB=20, stamps=False, wpol="nt", qpol="nt", codepf=True, spin=200000, POLL0=8, K0=4, W2=None, WSW=40, bar0=True, stepstamps=False):
    a = Asm()
    a.raw(HEADER.rstrip("\n"))
    a.raw(f"; @launch grid=(256,1,1) block=(512,1,1) lds={LDS_BYTES}")
    a.raw('.amdgcn_target "amdgcn-amd-amdhsa--gfx950"')
    a.raw(".text"); a.raw(f".globl {KNAME}"); a.raw(".p2align 8"); a.raw(f".type {KNAME},@function"); a.raw(f"{KNAME}:")
    KS = 128; VSP = 96; ACC = 64; S = 48; Q = 40; T = 24
    sK, sV, sWQ, sW1, sW2, sWO, sWS = 28, 32, 36, 40, 44, 48, 52
    WSR = f"s[{sWS}:{sWS+3}]"
    nstamp = [0]
    global STAMPS; STAMPS = []
    def stamp(name):
        if not stamps: return
        a("s_memrealtime s[96:97]"); a("s_waitcnt lgkmcnt(0)")
        a(f"v_writelane_b32 v23, s96, {nstamp[0]}")
        STAMPS.append(name); nstamp[0] += 1
    def srd(d, lo, nbytes):
        a(f"s_mov_b32 s{d}, s{lo}"); a(f"s_and_b32 s{d+1}, s{lo+1}, 0xffff"); a(f"s_mov_b32 s{d+2}, {nbytes:#x}"); a(f"s_mov_b32 s{d+3}, 0x20000")
    def kslot(n): return KS + 4 * n
    def vslot(n): return VSP + 4 * n if n < 8 else KS + 4 * (n - 8)
    def issue_bulk(n):
        if n < 64:
            i = n % 32
            a(f"s_add_u32 s59, s58, {(i // 4) * 0x100000:#x}")
            if n < 32: a.vm_issue(f"buffer_load_dwordx4 {vr(kslot(i))}, v2, s[{sK}:{sK+3}], s59 offen offset:{(i%4)*1024} nt", f"B{n}")
            else: a.vm_issue(f"buffer_load_dwordx4 {vr(vslot(i))}, v3, s[{sV}:{sV+3}], s59 offen offset:{(i%4)*1024} nt", f"B{n}")
        else:
            i = n - 64
            a.vm_issue(f"buffer_load_dwordx4 {vr(kslot(24+i))}, v20, s[{sWO}:{sWO+3}], {'s68' if i < 2 else 's69'} offen offset:{(i&1)*2048} {wpol}", f"B{n}")
    if W2 is None: W2 = W
    def step(n):
        w = W if n < WSW else W2
        if n - w >= 0: a.vm_wait(f"B{n-w}")
        issue_bulk(n)
        if stepstamps and n % 2 == 0: stamp(f"step{n}")
    def rbf(dst0, dst1, s0, s1, tmp):
        a(f"v_cvt_pk_bf16_f32 v{tmp}, v{s0}, v{s1}")
        a(f"v_lshlrev_b32 v{dst0}, 16, v{tmp}"); a(f"v_and_b32 v{dst1}, 0xffff0000, v{tmp}")
    def pk_add(d, x, y): a(f"v_pk_add_f32 v[{d}:{d+1}], v[{x}:{x+1}], v[{y}:{y+1}]")
    def tag_check(base, cnt, tmp, stag, mask):
        for i in range(cnt): a(f"v_xor_b32 v{base+i}, {stag}, v{base+i}")
        a(f"v_or3_b32 v{tmp}, v{base}, v{base+1}, v{base+2}")
        i = 3
        while i < cnt:
            if i + 1 < cnt: a(f"v_or3_b32 v{tmp}, v{tmp}, v{base+i}, v{base+i+1}"); i += 2
            else: a(f"v_or_b32 v{tmp}, v{tmp}, v{base+i}"); i += 1
        a(f"v_and_b32 v{tmp}, {mask:#x}, v{tmp}")
        a(f"v_cmp_eq_u32 vcc, 0, v{tmp}"); a("s_cmp_eq_u64 vcc, -1")
    def tag12(d, tmp):
        for r in range(4): a(f"v_add_u32 v{d+r}, 0x800, v{d+r}")
        a(f"v_mov_b32 v{tmp}, s61")
        for r in range(4): a(f"v_and_or_b32 v{d+r}, v{d+r}, s67, v{tmp}")

    a("s_cmp_ge_u32 s2, 256"); a("s_cbranch_scc1 L_end")
    a("s_load_dwordx16 s[4:19], s[0:1], 0")
    a("s_load_dwordx4 s[20:23], s[0:1], 64")
    a("s_load_dwordx2 s[24:25], s[0:1], 80")
    a("v_lshrrev_b32 v16, 6, v0")
    a("v_and_b32 v1, 63, v0")
    a("v_readfirstlane_b32 s3, v16")
    a("s_and_b32 s56, s2, 7"); a("s_lshr_b32 s57, s2, 3")
    a("s_lshr_b32 s91, s2, 2"); a("s_and_b32 s90, s2, 3")
    a("v_lshlrev_b32 v3, 4, v1")
    a("v_lshlrev_b32 v16, 2, v0")
    a("v_lshrrev_b32 v21, 3, v1")
    a("v_and_b32 v22, 7, v1"); a("v_lshlrev_b32 v22, 4, v22")
    a("v_lshl_add_u32 v17, v21, 15, v22")
    a("s_movk_i32 s59, 0x7000"); a("v_mad_u32_u24 v18, v21, s59, v22")
    a("s_lshl_b32 s59, s90, 3"); a("s_add_u32 s88, s59, s3")
    a("s_lshl_b32 s59, s88, 6"); a("v_lshl_add_u32 v19, v21, 3, s59")
    a("s_lshl_b32 s68, s88, 18"); a("s_lshl_b32 s69, s91, 7"); a("s_add_u32 s68, s68, s69")
    a("s_mul_i32 s70, s88, 0x38000"); a("s_add_u32 s70, s70, s69")
    a("s_lshl_b32 s71, s2, 15"); a("s_lshl_b32 s69, s3, 8"); a("s_add_u32 s71, s71, s69")
    a("s_cmp_lt_u32 s2, 224")
    a("s_cselect_b32 s70, s70, 0x7f000000")
    a("s_waitcnt lgkmcnt(0)")
    if stamps: a("v_mov_b32 v23, 0")
    stamp("kernarg")
    a.vm_issue("global_load_dword v14, v16, s[4:5]", "X0")
    a.vm_issue("global_load_dword v15, v16, s[4:5] offset:2048", "X1")
    a.vm_issue("global_load_dwordx2 v[10:11], v19, s[4:5]", "X4")
    a.vm_issue("global_load_dwordx2 v[12:13], v19, s[4:5] offset:2048", "X5")
    srd(sWQ, 10, 0x800000)
    if bar0: a("s_barrier")
    WQ = VSP; W1 = VSP + 16
    for i in range(4):
        if i: a("s_add_u32 s68, s68, 0x2000")
        a.vm_issue(f"buffer_load_dwordx4 {vr(WQ+4*i)}, v17, s[{sWQ}:{sWQ+3}], s68 offen {qpol}", f"WQ{i}")
    srd(sW1, 16, 0x700000)
    for i in range(4):
        if i: a("s_add_u32 s70, s70, 0x1c00")
        a.vm_issue(f"buffer_load_dwordx4 {vr(W1+4*i)}, v18, s[{sW1}:{sW1+3}], s70 offen {qpol}", f"W1{i}")
    a("s_load_dword s60, s[24:25], 0")
    a("v_lshrrev_b32 v21, 4, v1"); a("v_lshlrev_b32 v2, 6, v21")
    a("v_bfe_u32 v22, v1, 2, 2"); a("v_lshl_add_u32 v2, v22, 8, v2")
    a("v_and_b32 v22, 3, v1"); a("v_lshl_add_u32 v2, v22, 4, v2")
    a("s_lshl_b32 s58, s56, 23"); a("s_lshl_b32 s59, s57, 3"); a("s_add_u32 s59, s59, s3"); a("s_lshl_b32 s59, s59, 12"); a("s_add_u32 s58, s58, s59")
    srd(sK, 6, 0x4000000)
    for n in range(K0): issue_bulk(n)
    a("v_and_b32 v22, 15, v1"); a("v_lshlrev_b32 v22, 4, v22"); a("v_lshl_add_u32 v20, v21, 13, v22")
    srd(sV, 8, 0x4000000); srd(sW2, 18, 0x700000); srd(sWO, 12, 0x800000); srd(sWS, 24, WS_SIZE)
    if codepf:
        a("s_getpc_b64 s[92:93]")
        a.raw("L_pc:")
        a("s_and_b32 s93, s93, 0xffff"); a("s_mov_b32 s94, L_codeend-L_pc"); a("s_mov_b32 s95, 0x20000")
        a("s_lshl_b32 s59, s3, 11")
        for i in range(2):
            a.vm_issue(f"buffer_load_dwordx4 {vr(S+12)}, v3, s[92:95], s59 offen offset:{i*1024}", f"PF{i}")
    a("s_mov_b32 s63, 0x05040100"); a("s_mov_b32 s64, 0x07060302")
    a("s_mov_b32 s65, 0x3db504f3")
    a("s_mov_b32 s66, 0x3fb8aa3b")
    a("s_mov_b32 s67, 0xfffff000")
    for e in range(8):
        m = (3 << (2 * e)) * 0x00010001
        a(f"s_mov_b32 s{72+2*e}, {m:#x}"); a(f"s_mov_b32 s{73+2*e}, {m:#x}")
    a("s_mov_b32 s89, 0")
    a("v_and_b32 v21, 8, v1"); a("v_cmp_eq_u32 vcc, 0, v21")
    a("v_mov_b32 v21, 0xffff0000"); a("v_mov_b32 v22, 0xffff"); a("v_cndmask_b32 v4, v21, v22, vcc")

    def wave_sum2(r0, r1, sA, sB):
        for sh in (8, 4, 2, 1):
            a(f"v_add_f32_dpp v{r0}, v{r0}, v{r0} row_ror:{sh} row_mask:0xf bank_mask:0xf")
            a(f"v_add_f32_dpp v{r1}, v{r1}, v{r1} row_ror:{sh} row_mask:0xf bank_mask:0xf")
        for sw in ("v_permlane16_swap_b32", "v_permlane32_swap_b32"):
            a(f"v_mov_b32 v{sA}, v{r0}"); a(f"v_mov_b32 v{sB}, v{r1}")
            a(f"{sw} v{r0}, v{sA}"); a(f"{sw} v{r1}, v{sB}")
            a(f"v_add_f32 v{r0}, v{r0}, v{sA}"); a(f"v_add_f32 v{r1}, v{r1}, v{sB}")
    XU = [S, S + 4]; DV = [ACC, ACC + 2]; ST = Q
    a("v_and_b32 v16, 7, v1"); a("v_lshlrev_b32 v16, 4, v16")
    a("s_lshl_b32 s59, s3, 4"); a("v_mov_b32 v17, s59")
    a.vm_wait("X1")
    stamp("x arrived")
    for b in range(2):
        a(f"v_lshlrev_b32 v{DV[b]}, 16, v{14+b}"); a(f"v_and_b32 v{DV[b]+1}, 0xffff0000, v{14+b}")
    for b in range(2): a(f"v_add_f32 v{ST+2*b}, v{DV[b]}, v{DV[b]+1}")
    wave_sum2(ST, ST + 2, Q + 4, Q + 5)
    for b in range(2): a(f"v_mul_f32 v{ST+2*b}, 0x3c000000, v{ST+2*b}")
    for b in range(2):
        for j in range(2): a(f"v_sub_f32 v{DV[b]+j}, v{DV[b]+j}, v{ST+2*b}")
    for b in range(2): a(f"v_mul_f32 v{ST+2*b+1}, v{DV[b]}, v{DV[b]}")
    for b in range(2): a(f"v_fmac_f32 v{ST+2*b+1}, v{DV[b]+1}, v{DV[b]+1}")
    wave_sum2(ST + 1, ST + 3, Q + 4, Q + 5)
    a("s_mov_b64 exec, 1")
    a(f"ds_write_b128 v17, {vr(ST)} offset:{L_ST}")
    a("s_mov_b64 exec, -1")
    a.vm_wait("X5")
    for b in range(2):
        for j in range(2):
            a(f"v_lshlrev_b32 v{XU[b]+2*j}, 16, v{10+2*b+j}"); a(f"v_and_b32 v{XU[b]+2*j+1}, 0xffff0000, v{10+2*b+j}")
    a("s_waitcnt lgkmcnt(0)")
    a("s_add_u32 s60, s60, 1"); a("s_and_b32 s61, s60, 0xfff"); a("s_and_b32 s62, s60, 0xff")
    a("s_barrier")
    a(f"ds_read_b128 {vr(ST)}, v16 offset:{L_ST}")
    MEAN = [Q + 4, Q + 6]; SM = [Q + 5, Q + 7]
    a("s_waitcnt lgkmcnt(0)")
    for b in range(2): a(f"v_add_f32_dpp v{MEAN[b]}, v{ST+2*b}, v{ST+2*b} row_ror:4 row_mask:0xf bank_mask:0xf")
    for sh in (2, 1):
        for b in range(2): a(f"v_add_f32_dpp v{MEAN[b]}, v{MEAN[b]}, v{MEAN[b]} row_ror:{sh} row_mask:0xf bank_mask:0xf")
    for b in range(2): a(f"v_mul_f32 v{MEAN[b]}, 0x3e000000, v{MEAN[b]}")
    for b in range(2): a(f"v_sub_f32 v{ST+2*b}, v{ST+2*b}, v{MEAN[b]}")
    for b in range(2): a(f"v_mul_f32 v{ST+2*b}, v{ST+2*b}, v{ST+2*b}")
    for b in range(2): a(f"v_mul_f32 v{ST+2*b}, 0x43000000, v{ST+2*b}")
    for b in range(2): a(f"v_add_f32 v{SM[b]}, v{ST+2*b}, v{ST+2*b+1}")
    for sh in (4, 2, 1):
        for b in range(2): a(f"v_add_f32_dpp v{SM[b]}, v{SM[b]}, v{SM[b]} row_ror:{sh} row_mask:0xf bank_mask:0xf")
    for b in range(2): a(f"v_mul_f32 v{SM[b]}, 0x3a800000, v{SM[b]}")
    rbf(SM[0], SM[1], SM[0], SM[1], 16)
    for b in range(2): a(f"v_add_f32 v{SM[b]}, 0x3727c5ac, v{SM[b]}")
    rbf(SM[0], SM[1], SM[0], SM[1], 16)
    for b in range(2): a(f"v_sqrt_f32 v{SM[b]}, v{SM[b]}")
    rbf(SM[0], SM[1], SM[0], SM[1], 16)
    rbf(MEAN[0], MEAN[1], MEAN[0], MEAN[1], 16)
    RC = [Q + 1, Q + 3]
    for b in range(2): a(f"v_rcp_f32 v{RC[b]}, v{SM[b]}")
    for b in range(2):
        x = 10 + 2 * b; t = XU[b]
        for j in range(4): a(f"v_sub_f32 v{t+j}, v{t+j}, v{MEAN[b]}")
        for j in range(2): rbf(t + 2 * j, t + 2 * j + 1, t + 2 * j, t + 2 * j + 1, 16 + j)
        for j in range(4):
            q0 = S + 8 + (j & 1) * 2; rm = q0 + 1
            a(f"v_mul_f32 v{q0}, v{t+j}, v{RC[b]}")
            a(f"v_fma_f32 v{rm}, -v{q0}, v{SM[b]}, v{t+j}")
            a(f"v_fma_f32 v{t+j}, v{rm}, v{RC[b]}, v{q0}")
        for j in range(2): a(f"v_cvt_pk_bf16_f32 v{x+j}, v{t+2*j}, v{t+2*j+1}")
    stamp("xn done")
    def dots(mat, base):
        for j in range(4):
            for hi in range(2):
                e = 2 * j + hi
                t0 = S + 2 * (e & 3); t1 = t0 + 1
                sel = "s64" if hi else "s63"
                a(f"v_perm_b32 v{t0}, v{base+4+j}, v{base+j}, {sel}")
                a(f"v_perm_b32 v{t1}, v{base+12+j}, v{base+8+j}, {sel}")
                for b in range(2):
                    d = ACC + mat * 16 + b * 8 + e
                    a(f"v_dot2_f32_bf16 v{d}, v{t0}, v{10+2*b}, 0")
                for b in range(2):
                    d = ACC + mat * 16 + b * 8 + e
                    a(f"v_dot2_f32_bf16 v{d}, v{t1}, v{11+2*b}, v{d}")
    n = K0
    a.vm_wait("WQ3")
    stamp("wq arrived")
    for i in range(4):
        if i == 2: a("s_add_u32 s71, s71, 0x1000")
        a.vm_issue(f"buffer_load_dwordx4 {vr(T+4*i)}, v20, s[{sW2}:{sW2+3}], s71 offen offset:{(i&1)*2048} {wpol}", f"W2{i}")
    dots(0, WQ)
    a.vm_wait("W13")
    issue_bulk(n); n += 1
    dots(1, W1)
    issue_bulk(n); n += 1
    for i in range(16): a(f"v_permlane32_swap_b32 v{ACC+i}, v{ACC+16+i}")
    for i in range(16): a(f"v_add_f32 v{ACC+i}, v{ACC+i}, v{ACC+16+i}")
    for i in range(8): a(f"v_permlane16_swap_b32 v{ACC+i}, v{ACC+8+i}")
    for i in range(8): a(f"v_add_f32 v{ACC+i}, v{ACC+i}, v{ACC+8+i}")
    D_ = ACC + 16
    for i in range(4): a(f"v_add_f32_dpp v{D_+i}, v{ACC+i}, v{ACC+i} row_ror:8 row_mask:0xf bank_mask:0x3")
    for i in range(4): a(f"v_add_f32_dpp v{D_+i}, v{ACC+4+i}, v{ACC+4+i} row_ror:8 row_mask:0xf bank_mask:0xc")
    a("s_lshl_b32 s59, s3, 10"); a("v_add_u32 v17, s59, v3")
    a(f"ds_write_b128 v17, {vr(D_)} offset:{L_PART}")
    a("s_waitcnt lgkmcnt(0)")
    a("s_barrier")
    stamp("bar1")
    a("s_cmp_lg_u32 s3, 0"); a("s_cbranch_scc1 L_skipq")
    for w in range(8): a(f"ds_read_b128 {vr(ACC+4*w)}, v3 offset:{L_PART + w*1024}")
    a("v_and_b32 v16, 7, v1"); a("v_lshlrev_b32 v16, 5, v16")
    a("v_bfe_u32 v17, v1, 3, 1"); a("v_lshl_add_u32 v16, v17, 4, v16")
    a("v_bfe_u32 v17, v1, 4, 1"); a("v_lshl_add_u32 v16, v17, 14, v16")
    a("v_lshrrev_b32 v17, 5, v1"); a("v_lshl_add_u32 v16, v17, 17, v16")
    assert WS_H - WS_Q == 1 << 17
    a("s_lshl_b32 s59, s90, 15"); a("s_lshl_b32 s69, s91, 8"); a("s_add_u32 s59, s59, s69"); a(f"s_add_u32 s59, s59, {WS_Q:#x}")
    def sum8(base):
        for w in range(0, 8, 2):
            a(f"s_waitcnt lgkmcnt({6-w})")
            for h in range(2): pk_add(base + 4 * w + 2 * h, base + 4 * w + 2 * h, base + 4 * w + 4 + 2 * h)
        for (x, y) in ((0, 8), (16, 24), (0, 16)):
            for h in range(2): pk_add(base + x + 2 * h, base + x + 2 * h, base + y + 2 * h)
    sum8(ACC)
    for r in range(4): a(f"v_add_u32 v{ACC+r}, 0x80, v{ACC+r}")
    a("v_mov_b32 v17, s62"); a("s_movk_i32 s69, 0xff00")
    for r in range(4): a(f"v_and_or_b32 v{ACC+r}, v{ACC+r}, s69, v17")
    a(f"buffer_store_dwordx4 {vr(ACC)}, v16, {WSR}, s59 offen sc1")
    a.label("L_skipq")
    stamp("q published")
    PL = ACC
    a("v_and_b32 v21, 31, v1"); a("v_lshlrev_b32 v21, 4, v21"); a("v_lshrrev_b32 v22, 5, v1"); a("v_lshl_add_u32 v21, v22, 15, v21")
    a("s_lshl_b32 s69, s56, 12"); a("s_lshl_b32 s59, s3, 9"); a("s_add_u32 s69, s69, s59"); a(f"s_add_u32 s69, s69, {WS_Q:#x}"); a("s_add_u32 s70, s69, 0x10000")
    a("v_bfe_u32 v22, v1, 1, 2"); a("v_lshlrev_b32 v19, 15, v22"); a("v_and_b32 v22, 1, v1"); a("v_lshl_add_u32 v19, v22, 14, v19")
    a("v_lshrrev_b32 v22, 4, v1"); a("v_lshl_add_u32 v19, v22, 4, v19")
    a("s_lshl_b32 s71, s2, 6"); a(f"s_add_u32 s71, s71, {WS_H:#x}")
    def poll_issue():
        a(f"buffer_load_dwordx4 {vr(PL)}, v21, {WSR}, s69 offen sc1")
        a(f"buffer_load_dwordx4 {vr(PL+4)}, v21, {WSR}, s70 offen sc1")
        a(f"buffer_load_dwordx4 {vr(PL+8)}, v19, {WSR}, s71 offen sc1")
    def poll_check(): tag_check(PL, 12, 22, "s62", 0xff)
    lab = 0
    last_poll_step = None
    while n < NB:
        step(n)
        if n >= POLL0 and (n - POLL0) % W == 0:
            lab += 1; last_poll_step = n
            if n == POLL0:
                poll_issue()
            else:
                a("s_cmp_lg_u32 s89, 0"); a(f"s_cbranch_scc1 L_pk{lab}")
                poll_check()
                a("s_cselect_b32 s89, 1, 0"); a(f"s_cbranch_scc1 L_pk{lab}")
                poll_issue()
                a.label(f"L_pk{lab}")
        n += 1
    a("s_cmp_lg_u32 s89, 0"); a("s_cbranch_scc1 L_qok")
    a(f"s_mov_b32 s88, {spin}")
    a(f"s_waitcnt vmcnt({NB - 1 - last_poll_step})")
    a.flush()
    a.looplabel("L_qspin")
    poll_check()
    a("s_cbranch_scc1 L_qok")
    a("s_sub_u32 s88, s88, 1"); a("s_cbranch_scc1 L_qok")
    poll_issue(); a("s_waitcnt vmcnt(0)")
    a("s_branch L_qspin")
    a.label("L_qok")
    stamp("q seen")
    for h in range(2): pk_add(PL + 2 * h, PL + 2 * h, PL + 4 + 2 * h)
    a(f"v_permlane32_swap_b32 v{PL}, v{PL+2}"); a(f"v_permlane32_swap_b32 v{PL+1}, v{PL+3}")
    pk_add(PL, PL, PL + 2)
    a(f"v_cvt_pk_bf16_f32 v{PL}, v{PL}, v{PL+1}")
    a("v_and_b32 v21, 31, v1"); a("v_lshlrev_b32 v21, 3, v21"); a("v_lshrrev_b32 v22, 5, v1"); a("v_lshl_add_u32 v21, v22, 2, v21")
    a("s_lshl_b32 s59, s3, 8"); a("v_add_u32 v21, s59, v21")
    a(f"ds_write_b32 v21, v{PL} offset:{L_QS}")
    a("v_and_b32 v18, 3, v1"); a("v_lshlrev_b32 v18, 8, v18")
    a("v_lshrrev_b32 v19, 2, v1"); a("v_lshl_add_u32 v18, v19, 4, v18")
    H = PL + 8
    for sh in (2, 4):
        for j in range(4): a(f"v_add_f32_dpp v{H+j}, v{H+j}, v{H+j} row_ror:{sh} row_mask:0xf bank_mask:0xf")
    for j in range(2): rbf(H + 2 * j, H + 2 * j + 1, H + 2 * j, H + 2 * j + 1, 16 + j)
    HE = PL + 4
    for j in range(4): a(f"v_mul_f32 v{HE+j}, s66, v{H+j}")
    for j in range(4): a(f"v_exp_f32 v{HE+j}, -v{HE+j}")
    for j in range(4): a(f"v_add_f32 v{HE+j}, 1.0, v{HE+j}")
    for j in range(4): a(f"v_rcp_f32 v{HE+j}, v{HE+j}")
    for j in range(4): a(f"v_mul_f32 v{H+j}, v{H+j}, v{HE+j}")
    for j in range(2): a(f"v_cvt_pk_bf16_f32 v{16+j}, v{H+2*j}, v{H+2*j+1}")
    a("s_waitcnt lgkmcnt(0)")
    a("s_barrier")
    stamp("bar2")
    a(f"ds_read_b128 {vr(Q)}, v18 offset:{L_QS}"); a(f"ds_read_b128 {vr(Q+4)}, v18 offset:{L_QS+1024}")
    def gemv16(tr, base, ae, d):
        for e in range(8):
            a(f"v_cndmask_b32 v{ae+2*e}, 0, v{base}, s[{72+2*e}:{73+2*e}]")
            a(f"v_cndmask_b32 v{ae+2*e+1}, 0, v{base+1}, s[{72+2*e}:{73+2*e}]")
        for e in range(8):
            a(f"v_mfma_f32_16x16x16_bf16 {vr(d)}, v[{ae+2*e}:{ae+2*e+1}], v[{tr+2*e}:{tr+2*e+1}], {'0' if e == 0 else vr(d)}")
        tag12(d, 21)
    def transp16(raw, tr):
        for e in range(8):
            sel = "s64" if e & 1 else "s63"
            for p in range(2):
                a(f"v_perm_b32 v{tr+2*e+p}, v{raw+4*(2*p+1)+(e>>1)}, v{raw+4*(2*p)+(e>>1)}, {sel}")
    step(n); n += 1
    a.vm_wait("W23")
    transp16(T, ACC)
    a("v_and_b32 v22, 15, v1"); a("v_lshlrev_b32 v22, 6, v22"); a("v_lshrrev_b32 v21, 4, v1"); a("v_lshl_add_u32 v15, v21, 4, v22")
    gemv16(ACC, 16, ACC + 16, S)
    a("s_lshl_b32 s91, s2, 13"); a("s_lshl_b32 s69, s3, 10"); a("s_add_u32 s91, s91, s69")
    a(f"s_add_u32 s59, s91, {WS_F:#x}")
    a.vm_issue(f"buffer_store_dwordx4 {vr(S)}, v15, {WSR}, s59 offen sc1", "FST")
    a("s_waitcnt lgkmcnt(0)")
    stamp("ffn pub")
    def qk2(m):
        a.vm_wait(f"B{2*m+3}")
        for x in range(2):
            for u in range(4):
                nn = 2 * (m + x) + (u >> 1); hg = u & 1
                a(f"v_mfma_f32_16x16x32_bf16 {vr(ACC+16*x+4*u)}, {vr(kslot(nn))}, {vr(Q+4*hg)}, 0")
        for k in range(1, 4):
            for u in range(4):
                for x in range(2):
                    d = ACC + 16 * x + 4 * u; t = S + m + x
                    r = (u - k) % 4
                    src1 = f"v{d+u}" if k == 1 else f"v{t}"
                    a(f"v_add_f32_dpp v{t}, v{d+r}, {src1} row_ror:{4*k} row_mask:0xf bank_mask:{1<<u:#x}")
        t0, t1 = S + m, S + m + 1
        rbf(t0, t1, t0, t1, 16)
        a(f"v_mul_f32 v{t0}, s65, v{t0}"); a(f"v_mul_f32 v{t1}, s65, v{t1}")
        rbf(t0, t1, t0, t1, 16)
    for m in range(0, 16, 2):
        while n <= 2 * m + 3 + W - 1 or n <= NB + 1 + m:
            step(n); n += 1
        qk2(m)
    stamp("qk done")
    a(f"v_max3_f32 v16, v{S}, v{S+1}, v{S+2}"); a(f"v_max3_f32 v17, v{S+3}, v{S+4}, v{S+5}")
    a(f"v_max3_f32 v18, v{S+6}, v{S+7}, v{S+8}"); a(f"v_max3_f32 v19, v{S+9}, v{S+10}, v{S+11}")
    a(f"v_max3_f32 v16, v16, v{S+12}, v{S+13}"); a(f"v_max3_f32 v17, v17, v{S+14}, v{S+15}")
    a("v_max3_f32 v16, v16, v17, v18"); a("v_max_f32 v16, v16, v19")
    def xlane(op, r, tmp):
        a(f"{op}_dpp v{r}, v{r}, v{r} row_ror:8 row_mask:0xf bank_mask:0xf")
        for sw in ("v_permlane16_swap_b32", "v_permlane32_swap_b32"):
            a(f"v_mov_b32 v{tmp}, v{r}"); a(f"{sw} v{r}, v{tmp}"); a(f"{op} v{r}, v{r}, v{tmp}")
    xlane("v_max_f32", 16, 17)
    a("v_and_b32 v22, 7, v1"); a("v_lshlrev_b32 v22, 5, v22")
    a("s_lshl_b32 s59, s3, 2"); a("v_add_u32 v21, s59, v22")
    a("s_mov_b64 exec, 0xff")
    a(f"ds_write_b32 v21, v16 offset:{L_MX}")
    a("s_mov_b64 exec, -1")
    step(n); n += 1
    a("s_waitcnt lgkmcnt(0)")
    a("s_barrier")
    stamp("bar3")
    a(f"ds_read_b128 {vr(T)}, v22 offset:{L_MX}"); a(f"ds_read_b128 {vr(T+4)}, v22 offset:{L_MX+16}")
    step(n); n += 1
    a("s_waitcnt lgkmcnt(0)")
    a(f"v_max3_f32 v5, v{T}, v{T+1}, v{T+2}"); a(f"v_max3_f32 v16, v{T+3}, v{T+4}, v{T+5}")
    a(f"v_max3_f32 v5, v5, v{T+6}, v{T+7}"); a("v_max_f32 v5, v5, v16")
    for i in range(16): a(f"v_sub_f32 v{S+i}, v{S+i}, v5")
    for i in range(16): a(f"v_mul_f32 v{S+i}, s66, v{S+i}")
    for i in range(16): a(f"v_exp_f32 v{S+i}, v{S+i}")
    pk_add(16, S, S + 2); pk_add(18, S + 4, S + 6)
    for j in (8, 12):
        pk_add(16, 16, S + j); pk_add(18, 18, S + j + 2)
    pk_add(16, 16, 18); a("v_add_f32 v16, v16, v17")
    xlane("v_add_f32", 16, 17)
    a("s_mov_b64 exec, 0xff")
    a(f"ds_write_b32 v21, v16 offset:{L_LS}")
    a("s_mov_b64 exec, -1")
    for i in range(16): a(f"v_cvt_pk_bf16_f32 v{S+i}, v{S+i}, v{S+i}")
    for i in range(16): a(f"v_and_b32 v{S+i}, v{S+i}, v4")
    step(n); n += 1
    a("s_waitcnt lgkmcnt(0)")
    a("s_barrier")
    stamp("bar4")
    a("s_cmp_lg_u32 s3, 0"); a("s_cbranch_scc1 L_skipml")
    a(f"ds_read_b128 {vr(T)}, v22 offset:{L_LS}"); a(f"ds_read_b128 {vr(T+4)}, v22 offset:{L_LS+16}")
    a("v_mov_b32 v16, v5"); a("v_mov_b32 v17, s60"); a("v_mov_b32 v19, s60")
    a("s_lshl_b32 s59, s2, 7"); a(f"s_add_u32 s59, s59, {WS_ML:#x}")
    a("s_waitcnt lgkmcnt(0)")
    pk_add(T, T, T + 2); pk_add(T + 4, T + 4, T + 6); pk_add(T, T, T + 4); a(f"v_add_f32 v18, v{T}, v{T+1}")
    a("s_mov_b64 exec, 0xff")
    a(f"buffer_store_dwordx4 v[16:19], v3, {WSR}, s59 offen sc1")
    a("s_mov_b64 exec, -1")
    a.label("L_skipml")
    a("s_lshl_b32 s68, s2, 15"); a("s_lshl_b32 s59, s3, 8"); a("s_add_u32 s68, s68, s59"); a("s_add_u32 s69, s68, 0x1000")
    a("s_and_b32 s59, s57, 3"); a("s_cmp_eq_u32 s59, 0"); a("s_cselect_b32 s90, 1, 0")
    a("s_lshr_b32 s59, s2, 5"); a("s_lshl_b32 s59, s59, 3"); a("s_add_u32 s57, s59, s56")
    def pv_half(g, x):
        R = [vslot(8 * g + i) for i in range(8)]
        for e2 in range(4):
            e = 4 * x + e2
            sel = "s64" if e & 1 else "s63"
            for p in range(4):
                a(f"v_perm_b32 v{T+4*e2+p}, v{R[2*p+1]+(e>>1)}, v{R[2*p]+(e>>1)}, {sel}")
        for e2 in range(4):
            e = 4 * x + e2
            a(f"v_mfma_f32_16x16x32_bf16 {vr(ACC+4*e)}, {vr(S+4*g)}, {vr(T+4*e2)}, {'0' if g == 0 else vr(ACC+4*e)}")
    def upto(last):
        nonlocal n
        while n <= min(last, 67):
            step(n); n += 1
    GM = VSP; GF = VSP + 16
    def col_issue(base, wsoff, track=None):
        for i in range(4):
            a(f"s_add_u32 s59, s56, {wsoff + i*0x10000:#x}")
            ln = f"buffer_load_dwordx4 {vr(base+4*i)}, v14, {WSR}, s59 offen sc1"
            if track: a.vm_issue(ln, f"{track}{i}")
            else: a(ln)
    def col_reduce(base, ldsoff):
        for h in range(2): pk_add(base + 2 * h, base + 2 * h, base + 4 + 2 * h)
        for h in range(2): pk_add(base + 8 + 2 * h, base + 8 + 2 * h, base + 12 + 2 * h)
        for h in range(2): pk_add(base + 2 * h, base + 2 * h, base + 8 + 2 * h)
        a(f"v_permlane32_swap_b32 v{base}, v{base+2}"); a(f"v_permlane32_swap_b32 v{base+1}, v{base+3}")
        pk_add(base, base, base + 2)
        a(f"v_permlane16_swap_b32 v{base}, v{base+1}")
        a(f"v_add_f32 v{base}, v{base}, v{base+1}")
        a(f"v_add_f32_dpp v{base}, v{base}, v{base} row_ror:8 row_mask:0xf bank_mask:0xf")
        a(f"ds_write_b32 v13, v{base} offset:{ldsoff}")
    def ml_issue(track):
        for i in range(4):
            ln = f"buffer_load_dwordx4 {vr(GM+4*i)}, v22, {WSR}, {'s71' if i&1 else 's70'} offen offset:{(i>>1)*512} sc1"
            if track: a.vm_issue(ln, f"ML{i}")
            else: a(ln)
    for g in range(4):
        upto(32 + 8 * g + 7 + W2)
        a.vm_wait(f"B{32+8*g+7}")
        if g == 3: stamp("V arrived")
        pv_half(g, 0)
        if g < 3: upto(32 + 8 * g + 8 + W2)
        pv_half(g, 1)
        if g == 1:
            a("v_and_b32 v22, 15, v1"); a("v_lshlrev_b32 v22, 10, v22")
            a("s_lshr_b32 s59, s2, 6"); a("s_lshl_b32 s70, s59, 7")
            a("s_bfe_u32 s59, s2, 0x30003"); a("s_lshl_b32 s59, s59, 4"); a("s_add_u32 s70, s70, s59")
            a(f"s_add_u32 s70, s70, {WS_ML:#x}"); a("s_add_u32 s71, s70, 0x4000")
            ml_issue(True)
            a("v_lshrrev_b32 v21, 3, v1"); a("v_and_b32 v16, 7, v1"); a("v_lshlrev_b32 v14, 13, v21"); a("v_lshl_add_u32 v14, v16, 4, v14")
            a("s_lshl_b32 s56, s57, 7"); a("s_lshl_b32 s59, s3, 18"); a("s_add_u32 s56, s56, s59")
            a("s_cmp_eq_u32 s90, 1"); a("s_cselect_b32 s56, s56, 0x7f000000")
            a("v_lshrrev_b32 v21, 4, v1"); a("v_lshl_add_u32 v13, v16, 2, v21"); a("v_lshlrev_b32 v13, 5, v13")
            a("s_lshl_b32 s59, s3, 2"); a("v_add_u32 v13, s59, v13")
            col_issue(GF, WS_F, "FG")
        if g == 2:
            a.vm_wait("FG3")
            a(f"s_mov_b32 s88, {spin}")
            a.flush()
            a.looplabel("L_mlspin")
            a(f"v_cmp_eq_u32 vcc, s60, v{GM+1}")
            for r in (3, 5, 7, 9, 11, 13, 15):
                a(f"v_cmp_eq_u32 s[92:93], s60, v{GM+r}"); a("s_and_b64 vcc, vcc, s[92:93]")
            a("s_cmp_eq_u64 vcc, -1"); a("s_cbranch_scc1 L_mlok")
            a("s_sub_u32 s88, s88, 1"); a("s_cbranch_scc1 L_mlok")
            ml_issue(False); a("s_waitcnt vmcnt(0)"); a("s_branch L_mlspin")
            a.label("L_mlok")
            stamp("ml seen")
            for b in range(2): a(f"v_max_f32 v{16+b}, v{GM+8*b}, v{GM+8*b+4}")
            for sh in (8, 4, 2, 1):
                for b in range(2): a(f"v_max_f32_dpp v{16+b}, v{16+b}, v{16+b} row_ror:{sh} row_mask:0xf bank_mask:0xf")
            for i in range(4): a(f"v_sub_f32 v{6+i}, v{GM+4*i}, v{16+(i>>1)}")
            for i in range(4): a(f"v_mul_f32 v{6+i}, s66, v{6+i}")
            for i in range(4): a(f"v_exp_f32 v{6+i}, v{6+i}")
            for b in range(2): a(f"v_mul_f32 v{16+b}, v{6+2*b}, v{GM+8*b+2}")
            for b in range(2): a(f"v_fmac_f32 v{16+b}, v{7+2*b}, v{GM+8*b+6}")
            for sh in (8, 4, 2, 1):
                for b in range(2): a(f"v_add_f32_dpp v{16+b}, v{16+b}, v{16+b} row_ror:{sh} row_mask:0xf bank_mask:0xf")
            for b in range(2): a(f"v_rcp_f32 v{16+b}, v{16+b}")
            for i in range(4): a(f"v_mul_f32 v{6+i}, v{6+i}, v{16+(i>>1)}")
            a("s_and_b32 s59, s3, 3")
            a("s_cmp_eq_u32 s59, 1"); a("s_cselect_b64 vcc, -1, 0"); a("v_cndmask_b32 v6, v6, v7, vcc")
            a("s_cmp_eq_u32 s59, 2"); a("s_cselect_b64 vcc, -1, 0"); a("v_cndmask_b32 v6, v6, v8, vcc")
            a("s_cmp_eq_u32 s59, 3"); a("s_cselect_b64 vcc, -1, 0"); a("v_cndmask_b32 v6, v6, v9, vcc")
            a("v_and_b32 v16, 60, v1")
            a("ds_bpermute_b32 v6, v16, v6")
            a("s_cmp_eq_u32 s90, 0"); a("s_cbranch_scc1 L_skipf")
            a(f"s_mov_b32 s88, {spin}")
            a.flush()
            a.looplabel("L_fspin")
            tag_check(GF, 16, 16, "s61", 0xfff)
            a("s_cbranch_scc1 L_fok")
            a("s_sub_u32 s88, s88, 1"); a("s_cbranch_scc1 L_fok")
            col_issue(GF, WS_F); a("s_waitcnt vmcnt(0)"); a("s_branch L_fspin")
            a.label("L_fok")
            col_reduce(GF, L_RF)
            a("v_and_b32 v16, 1, v1"); a("v_lshlrev_b32 v16, 11, v16"); a("v_bfe_u32 v17, v1, 1, 4"); a("v_lshl_add_u32 v16, v17, 1, v16")
            a("s_lshl_b32 s59, s57, 5"); a("v_add_u32 v12, s59, v16")
            a("global_load_ushort v10, v12, s[4:5]")
            a.label("L_skipf")
            stamp("ffn gathered")
    upto(67)
    Z = VSP
    for r in range(4):
        for e in range(4): a(f"v_permlane32_swap_b32 v{ACC+4*e+r}, v{ACC+4*(e+4)+r}")
    a("v_bfe_u32 v21, v1, 4, 1"); a("v_lshlrev_b32 v21, 11, v21")
    a("v_and_b32 v16, 15, v1"); a("v_lshl_add_u32 v21, v16, 5, v21")
    a("v_lshrrev_b32 v17, 5, v1"); a("v_lshl_add_u32 v21, v17, 4, v21")
    a("s_lshl_b32 s59, s3, 12"); a("v_add_u32 v21, s59, v21")
    for r in range(4):
        for e in range(4): a(f"v_add_f32 v{Z+4*r+e}, v{ACC+4*e+r}, v{ACC+4*(e+4)+r}")
        a(f"ds_write_b128 v21, {vr(Z+4*r)} offset:{L_OR + r*512}")
    a("s_and_b32 s59, s3, 3"); a("s_lshl_b32 s59, s59, 10"); a("v_add_u32 v21, s59, v3")
    a("v_lshrrev_b32 v22, 2, v1"); a("v_lshlrev_b32 v22, 12, v22"); a("v_and_b32 v16, 3, v1"); a("v_lshl_add_u32 v22, v16, 4, v22")
    a("s_and_b32 s59, s2, 3"); a("s_lshl_b32 s70, s59, 18")
    a("s_lshl_b32 s59, s3, 16"); a("s_add_u32 s70, s70, s59")
    a("s_bfe_u32 s59, s2, 0x10002"); a("s_lshl_b32 s59, s59, 11"); a("s_add_u32 s70, s70, s59")
    a("s_lshr_b32 s59, s2, 3"); a("s_lshl_b32 s59, s59, 6"); a("s_add_u32 s70, s70, s59")
    a(f"s_add_u32 s70, s70, {WS_O:#x}")
    a("s_lshl_b32 s71, s2, 12"); a(f"s_add_u32 s71, s71, {WS_O:#x}")
    a("s_waitcnt lgkmcnt(0)")
    a("s_barrier")
    stamp("bar5")
    G1 = KS
    a("s_cmp_ge_u32 s3, 4"); a("s_cbranch_scc1 L_opoll")
    for w in range(8): a(f"ds_read_b128 {vr(ACC+4*w)}, v21 offset:{L_OR + w*4096}")
    sum8(ACC)
    tag12(ACC, 21)
    a(f"buffer_store_dwordx4 {vr(ACC)}, v22, {WSR}, s70 offen sc1")
    stamp("o published")
    a("s_branch L_ojoin")
    a.label("L_opoll")
    a(f"s_mov_b32 s88, {spin}")
    a.flush()
    a.looplabel("L_ospin")
    a(f"buffer_load_dwordx4 {vr(G1)}, v21, {WSR}, s71 offen sc1")
    a("s_waitcnt vmcnt(0)")
    tag_check(G1, 4, 16, "s61", 0xfff)
    a("s_cbranch_scc1 L_ook")
    a("s_sub_u32 s88, s88, 1"); a("s_cbranch_scc0 L_ospin")
    a.label("L_ook")
    stamp("o seen")
    for j in range(4): a(f"v_mul_f32 v{G1+j}, v6, v{G1+j}")
    a(f"v_permlane32_swap_b32 v{G1}, v{G1+2}"); a(f"v_permlane32_swap_b32 v{G1+1}, v{G1+3}")
    pk_add(G1, G1, G1 + 2)
    a(f"v_permlane16_swap_b32 v{G1}, v{G1+1}")
    a(f"v_add_f32 v{G1}, v{G1}, v{G1+1}")
    for sh in (8, 4): a(f"v_add_f32_dpp v{G1}, v{G1}, v{G1} row_ror:{sh} row_mask:0xf bank_mask:0xf")
    a("v_and_b32 v16, 3, v1"); a("v_lshlrev_b32 v16, 4, v16"); a("v_lshrrev_b32 v17, 4, v1"); a("v_lshl_add_u32 v16, v17, 2, v16")
    a("s_and_b32 s59, s3, 3"); a("s_lshl_b32 s59, s59, 6"); a("v_add_u32 v16, s59, v16")
    a(f"ds_write_b32 v16, v{G1} offset:{L_O2}")
    a.label("L_ojoin")
    a.vm_wait("B67")
    transp16(kslot(24), kslot(28))
    a("v_and_b32 v16, 1, v1"); a("v_lshlrev_b32 v16, 7, v16"); a("v_lshrrev_b32 v17, 4, v1"); a("v_lshl_add_u32 v16, v17, 4, v16")
    a(f"s_add_u32 s70, s91, {WS_A:#x}")
    a("s_waitcnt lgkmcnt(0)")
    a("s_barrier")
    stamp("bar6")
    a(f"ds_read_b128 {vr(G1)}, v16 offset:{L_O2}"); a(f"ds_read_b128 {vr(G1+4)}, v16 offset:{L_O2+64}")
    a("s_waitcnt lgkmcnt(0)")
    for h in range(2): pk_add(G1 + 2 * h, G1 + 2 * h, G1 + 4 + 2 * h)
    a(f"v_cvt_pk_bf16_f32 v16, v{G1}, v{G1+1}"); a(f"v_cvt_pk_bf16_f32 v17, v{G1+2}, v{G1+3}")
    gemv16(kslot(28), 16, ACC + 16, S)
    a(f"buffer_store_dwordx4 {vr(S)}, v15, {WSR}, s70 offen sc1")
    stamp("a published")
    a("s_cmp_eq_u32 s90, 0"); a("s_cbranch_scc1 L_fin")
    G2 = KS + 32
    a(f"s_mov_b32 s88, {spin}")
    a.flush()
    a.looplabel("L_aspin")
    col_issue(G2, WS_A)
    a("s_waitcnt vmcnt(0)")
    tag_check(G2, 16, 16, "s61", 0xfff)
    a("s_cbranch_scc1 L_aok")
    a("s_sub_u32 s88, s88, 1"); a("s_cbranch_scc0 L_aspin")
    a.label("L_aok")
    stamp("a seen")
    col_reduce(G2, L_RA)
    a("v_and_b32 v16, 31, v1"); a("v_lshlrev_b32 v16, 5, v16")
    a("s_waitcnt lgkmcnt(0)")
    a("s_barrier")
    a("s_cmp_lg_u32 s3, 0"); a("s_cbranch_scc1 L_fin")
    a(f"ds_read_b128 {vr(G2)}, v16 offset:{L_RA}"); a(f"ds_read_b128 {vr(G2+4)}, v16 offset:{L_RA+16}")
    a(f"ds_read_b128 {vr(G2+8)}, v16 offset:{L_RF}"); a(f"ds_read_b128 {vr(G2+12)}, v16 offset:{L_RF+16}")
    a("v_lshlrev_b32 v10, 16, v10")
    a("s_waitcnt lgkmcnt(0)")
    for x in (0, 8):
        pk_add(G2 + x, G2 + x, G2 + x + 2); pk_add(G2 + x + 4, G2 + x + 4, G2 + x + 6)
    for x in (0, 8): pk_add(G2 + x, G2 + x, G2 + x + 4)
    for x in (0, 8): a(f"v_add_f32 v{G2+x}, v{G2+x}, v{G2+x+1}")
    rbf(G2, G2 + 8, G2, G2 + 8, 16)
    a(f"v_add_f32 v{G2}, v{G2}, v10")
    a(f"v_cvt_pk_bf16_f32 v16, v{G2}, v{G2}"); a("v_and_b32 v16, 0xffff0000, v16")
    a(f"v_add_f32 v16, v16, v{G2+8}")
    a("v_cvt_pk_bf16_f32 v16, v16, v16")
    a("s_mov_b32 exec_hi, 0")
    a("global_store_short v12, v16, s[20:21]")
    a("s_cmp_lg_u32 s2, 0"); a("s_cbranch_scc1 L_noep")
    a("v_mov_b32 v21, 0"); a("v_mov_b32 v22, s60")
    a("s_mov_b64 exec, 1")
    a(f"buffer_store_dword v22, v21, {WSR}, 0 offen sc1")
    a.label("L_noep")
    a("s_mov_b64 exec, -1")
    a.label("L_fin")
    if stamps:
        stamp("end")
        a("s_lshl_b32 s59, s2, 3"); a("s_add_u32 s59, s59, s3"); a("s_lshl_b32 s59, s59, 8"); a(f"s_add_u32 s59, s59, {WS_STAMP:#x}")
        a("v_lshlrev_b32 v21, 2, v1"); a("v_add_u32 v21, s59, v21")
        a("global_store_dword v21, v23, s[24:25]")
    a.label("L_end")
    a("s_endpgm")
    a.raw("L_codeend:")
    a.raw('.section .rodata,"a"'); a.raw(".p2align 6"); a.raw(f".amdhsa_kernel {KNAME}")
    for x in ("next_free_vgpr 256", "next_free_sgpr 102", "accum_offset 256", "group_segment_fixed_size 0", "kernarg_size 88",
              "user_sgpr_count 2", "user_sgpr_kernarg_segment_ptr 1", "system_sgpr_workgroup_id_x 1"):
        a.raw("  .amdhsa_" + x)
    a.raw(".end_amdhsa_kernel")
    open(path, "w").write(a.text())
    return a

if __name__ == "__main__":
    a = gen(sys.argv[1] if len(sys.argv) > 1 else "k.s")
    print("nops inserted:", a.nops, "lines", len(a.L))
```
